```python
import torch

def _softmax(x, axis=-1):
    return torch.softmax(x, dim=axis)
def _gelu(x):
    return torch.nn.functional.gelu(x, approximate="tanh")
def _silu(x):
    return torch.nn.functional.silu(x)
def _sigmoid(x):
    return torch.sigmoid(x)
def _layernorm(x, axis=-1, eps=1e-5):
    m = x.mean(dim=axis, keepdim=True)
    v = x.var(dim=axis, keepdim=True, unbiased=False)
    return (x - m) / torch.sqrt(v + eps)
def _scatter_add(tgt, idx, src, axis=0):
    return tgt.clone().index_add_(axis, idx, src)
def _segment_sum(src, seg, n):
    out = torch.zeros((n,) + src.shape[1:], dtype=src.dtype)
    return out.index_add_(0, seg, src)
def _pad(x, pw):
    flat = tuple(v for pair in reversed(pw) for v in pair)
    return torch.nn.functional.pad(x, flat)

kernel_name = 'parallel_sum__softmax_full_mha__swiglu_ffn__prompt'

def setup_inputs():

    _w = (lambda a: (lambda t: t.to(torch.bfloat16) if t.is_floating_point() else t)(torch.as_tensor(a)))
    def _A_setup():
        B, S, D = 1, 2048, 1024
        return {
            "x": _w((lambda *s: torch.randn(*s, dtype=torch.bfloat16) * 0.05)(B, S, D)),
            "wqkv": _w((lambda *s: torch.randn(*s, dtype=torch.bfloat16) * 0.05)(D, 3 * D)),
            "wo": _w((lambda *s: torch.randn(*s, dtype=torch.bfloat16) * 0.05)(D, D)),
        }
    _A_in = _A_setup()

    def _B_setup():
        B, S, D, F = 1, 2048, 1024, 3584
        return {
            "x": _w((lambda *s: torch.randn(*s, dtype=torch.bfloat16) * 0.05)(B, S, D)),
            "w_gate": _w((lambda *s: torch.randn(*s, dtype=torch.bfloat16) * 0.05)(D, F)),
            "w_up": _w((lambda *s: torch.randn(*s, dtype=torch.bfloat16) * 0.05)(D, F)),
            "w_down": _w((lambda *s: torch.randn(*s, dtype=torch.bfloat16) * 0.05)(F, D)),
        }
    _B_in = _B_setup()

    return {
        "A_x": _A_in["x"],
        "A_wqkv": _A_in["wqkv"],
        "A_wo": _A_in["wo"],
        "B_x": _B_in["x"],
        "B_w_gate": _B_in["w_gate"],
        "B_w_up": _B_in["w_up"],
        "B_w_down": _B_in["w_down"],
    }

def reference(A_x, A_wqkv, A_wo, B_x, B_w_gate, B_w_up, B_w_down):
    def _A_ref(x, wqkv, wo):
        B, S, D = x.shape
        H = 32; Dh = D // H
        qkv = (lambda x, *d: x.permute(*d))((x @ wqkv).reshape(B, S, 3, H, Dh), 2, 0, 3, 1, 4)
        q, k, v = qkv[0], qkv[1], qkv[2]
        scale = Dh ** -0.5
        scores = torch.einsum("bhqd,bhkd->bhqk", q, k) * scale
        p = _softmax(scores, axis=-1)
        o = torch.einsum("bhqk,bhkd->bhqd", p, v)
        return (lambda x, *d: x.permute(*d))(o, 0, 2, 1, 3).reshape(B, S, D) @ wo

    def _B_ref(x, w_gate, w_up, w_down):
        g = _silu(x @ w_gate)
        u = x @ w_up
        return (g * u) @ w_down

    x = A_x
    xn = _layernorm(x, axis=-1)
    return x + _A_ref(xn, A_wqkv, A_wo) + _B_ref(xn, B_w_gate, B_w_up, B_w_down)
```

```python
class Asm:
    def __init__(self):
        self.lines = []
    def __call__(self, s):
        for l in s.strip("\n").split("\n"):
            self.lines.append("    " + l.strip() if not l.strip().endswith(":") else l.strip())
    def raw(self, s):
        self.lines.append(s)
    def label(self, name):
        self.lines.append(name + ":")
    def ext(self, lst):
        for l in lst:
            self(l)
    def text(self):
        return "\n".join(self.lines) + "\n"

def v(a, n=1):
    return f"v{a}" if n == 1 else f"v[{a}:{a+n-1}]"
def a(x, n=1):
    return f"a{x}" if n == 1 else f"a[{x}:{x+n-1}]"
def s(x, n=1):
    return f"s{x}" if n == 1 else f"s[{x}:{x+n-1}]"

def srd(A, d, base, nbytes):
    A(f"s_mov_b32 s{d}, s{base}")
    A(f"s_and_b32 s{d+1}, s{base+1}, 0xffff")
    A(f"s_mov_b32 s{d+2}, {nbytes:#x}")
    A(f"s_mov_b32 s{d+3}, 0x00020000")

def srd_off(A, d, base, off, nbytes):
    A(f"s_add_u32 s{d}, s{base}, {off:#x}")
    A(f"s_addc_u32 s{d+1}, s{base+1}, 0")
    A(f"s_and_b32 s{d+1}, s{d+1}, 0xffff")
    A(f"s_mov_b32 s{d+2}, {nbytes:#x}")
    A(f"s_mov_b32 s{d+3}, 0x00020000")

def kernel_begin(A, name):
    A.raw(".text")
    A.raw(f".globl {name}")
    A.raw(".p2align 8")
    A.raw(f".type {name},@function")
    A.label(name)

def kernel_desc(name, nv, acc_off, ns=102):
    return f""".section .rodata,"a"
.p2align 6
.amdhsa_kernel {name}
  .amdhsa_next_free_vgpr {nv}
  .amdhsa_next_free_sgpr {ns}
  .amdhsa_accum_offset {acc_off}
  .amdhsa_group_segment_fixed_size 0
  .amdhsa_kernarg_size 80
  .amdhsa_user_sgpr_count 2
  .amdhsa_user_sgpr_kernarg_segment_ptr 1
  .amdhsa_system_sgpr_workgroup_id_x 1
.end_amdhsa_kernel
"""

class LgkmTracker:
    def __init__(self, A):
        self.A = A
        self.issued = 0
        self.done = 0
    def issue(self, line):
        if self.issued - self.done >= 15: self.need(self.issued - 12)
        self.A(line)
        self.issued += 1
        return self.issued - 1
    def need(self, idx):
        if idx < self.done:
            return
        n = self.issued - 1 - idx
        n = min(n, 15)
        self.A(f"s_waitcnt lgkmcnt({n})")
        self.done = self.issued - n
    def drain(self):
        if self.done < self.issued:
            self.A("s_waitcnt lgkmcnt(0)")
            self.done = self.issued

WS_XN = 0
WS_Q = 4 << 20
WS_KV = 8 << 20
WS_A2 = 16 << 20
A2_BYTES = 16 * 288 * 4096
WS_PART = 42 << 20

STAMPS = False
STAMP_REGION = 0
def stamp(A, n):
    if not globals()['STAMPS']: return
    A(f"s_memtime s[{76+4*n}:{77+4*n}]")
    A(f"s_memrealtime s[{78+4*n}:{79+4*n}]")
def stamp_flush(A, nst, wave_sgpr, srd_base_pair, total=5):
    if not STAMPS: return
    A("s_waitcnt lgkmcnt(0)")
    A(f"s_add_u32 s64, s{srd_base_pair}, {(60<<20) + (globals()['STAMP_REGION'] << 20):#x}")
    A(f"s_addc_u32 s65, s{srd_base_pair+1}, 0")
    A("s_and_b32 s65, s65, 0xffff")
    A("s_mov_b32 s66, 0x100000")
    A("s_mov_b32 s67, 0x00020000")
    A(f"s_lshl_b32 s68, s2, 3")
    A(f"s_add_u32 s68, s68, s{wave_sgpr}")
    A(f"s_mul_i32 s68, s68, {total*8}")
    A("v_mov_b32 v0, 0")
    for n in range(nst):
        A(f"v_mov_b32 v2, s{76+4*n}")
        A(f"v_mov_b32 v3, s{78+4*n}")
        A(f"buffer_store_dwordx2 v[2:3], v0, s[64:67], s68 offen offset:{8*n}")
        A("s_nop 1")

import os as _os
STAMP_KEYS = _os.environ.get("STAMP_AT", "start,g1end,atstart,atend,woend,end").split(",")
def kstamp(A, key):
    if not globals()['STAMPS'] or key not in STAMP_KEYS: return
    stamp(A, STAMP_KEYS.index(key))
    A("s_waitcnt lgkmcnt(0)")

class VmTracker:
    def __init__(self, A):
        self.A = A; self.issued = 0; self.done = 0
    def issue(self, line=None):
        if line: self.A(line)
        self.issued += 1
        return self.issued - 1
    def wait_text(self, idx):
        if idx < self.done: return None
        n = min(self.issued - 1 - idx, 63)
        self.done = self.issued - n
        return f"s_waitcnt vmcnt({n})"
    def need(self, idx):
        t = self.wait_text(idx)
        if t: self.A(t)
    def mark(self):
        return self.issued
    def need_mark(self, m):
        n = min(self.issued - m, 63)
        self.A(f"s_waitcnt vmcnt({n})")
        self.done = max(self.done, self.issued - n)

WS_FLAG = 39 << 20
FQ, FH, FO, FS, FC, FP = 0, 4096, 5120, 6144, 7168, 8192

_ct = [0]
def code_touch(lab0, lab1, vtmp, vdst, sp):
    _ct[0] += 1
    here = f".Lct{_ct[0]}"
    return [f"s_getpc_b64 s[{sp}:{sp+1}]\n{here}:\ns_add_u32 s{sp}, s{sp}, {lab0}-{here}\ns_addc_u32 s{sp+1}, s{sp+1}, 0",
            f"s_lshr_b32 s{sp+2}, s2, 3", f"s_lshl_b32 s{sp+2}, s{sp+2}, 2", f"s_add_u32 s{sp+2}, s{sp+2}, s31",
            f"s_and_b32 s{sp+2}, s{sp+2}, 15", f"s_lshl_b32 s{sp+2}, s{sp+2}, 7",
            f"v_lshlrev_b32 v{vtmp}, 11, v2", f"v_add_u32 v{vtmp}, s{sp+2}, v{vtmp}",
            f"v_min_u32 v{vtmp}, {lab1}-{lab0}-4, v{vtmp}",
            f"global_load_dword v{vdst}, v{vtmp}, s[{sp}:{sp+1}]"]

WS_STAT = (39 << 20) + (64 << 10)
WS_CS = (39 << 20) + (128 << 10)
```

```python
import sys, importlib
sys.path.insert(0, "gen")
from asm import *
HDR = open("parallel_sum__softmax_full_mha__swiglu_ffn__prompt.s.ref").read().split("; Override launch")[0]
def build(gens, out):
    A = Asm(); infos = []
    for g in gens: infos.append(g(A))
    txt = HDR
    for i in infos:
        txt += f"; @launch kernel={i['name']} grid=({i['grid']},1,1) block=({i['block']},1,1) lds={i['lds']}\n"
    txt += '.amdgcn_target "amdgcn-amd-amdhsa--gfx950"\n' + A.text()
    for i in infos: txt += kernel_desc(i['name'], i['nv'], i['acc'])
    open(out, "w").write(txt)
    return infos
if __name__ == "__main__":
    import asm
    if "--stamps" in sys.argv: asm.STAMPS = True; sys.argv.remove("--stamps")
    which = sys.argv[2].split(",") if len(sys.argv) > 2 else ["ln", "gemm1", "attn", "gemm2"]
    stamp_on = asm.STAMPS; sk = sys.argv[3] if len(sys.argv) > 3 else which[-1]
    gens = []
    for w in which:
        m = importlib.import_module("k_" + w); f = getattr(m, "gen_" + w)
        def g(A, f=f, w=w):
            asm.STAMPS = stamp_on and (w == sk or sk == "all")
            asm.STAMP_REGION = which.index(w) if sk == "all" else 0
            return f(A)
        gens.append(g)
    build(gens, sys.argv[1])
```

```python
import sys, importlib, os
sys.path.insert(0, "gen")
from asm import *
HDR = open("parallel_sum__softmax_full_mha__swiglu_ffn__prompt.s.ref").read().split("; Override launch")[0]
def build(gens, out):
    A = Asm(); infos = []
    for g in gens: infos.append(g(A))
    txt = HDR
    single = len(infos) == 1 and os.environ.get("SINGLE")
    if single: txt += f"; @launch grid=({infos[0]['grid']},1,1) block=({infos[0]['block']},1,1) lds={infos[0]['lds']}\n"
    for i in ([] if single else infos):
        txt += f"; @launch kernel={i['name']} grid=({i['grid']},1,1) block=({i['block']},1,1) lds={i['lds']}\n"
    body = A.text().replace(", ", ",").replace(" offset:0 ", " ").replace(" offset:0\n", "\n").replace("\n    ", "\n")
    txt += '.amdgcn_target "amdgcn-amd-amdhsa--gfx950"\n' + body
    for i in infos: txt += kernel_desc(i['name'], i['nv'], i['acc'])
    if single:
        import re
        txt = re.sub(r"\b" + infos[0]['name'] + r"_", "L_", txt).replace(infos[0]['name'], "parallel_sum__softmax_full_mha__swiglu_ffn__prompt_kernel")
    open(out, "w").write(txt)
    return infos
if __name__ == "__main__":
    import asm
    if "--stamps" in sys.argv: asm.STAMPS = True; sys.argv.remove("--stamps")
    which = sys.argv[2].split(",") if len(sys.argv) > 2 else ["ln", "gemm1", "attn", "gemm2"]
    stamp_on = asm.STAMPS; sk = sys.argv[3] if len(sys.argv) > 3 else which[-1]
    gens = []
    for w in which:
        m = importlib.import_module("k_" + w); f = getattr(m, "gen_" + w)
        def g(A, f=f, w=w):
            asm.STAMPS = stamp_on and (w == sk or sk == "all")
            asm.STAMP_REGION = which.index(w) if sk == "all" else 0
            return f(A)
        gens.append(g)
    build(gens, sys.argv[1])
```

```python
class Asm:
    def __init__(self):
        self.lines = []
    def __call__(self, s):
        for l in s.strip("\n").split("\n"):
            self.lines.append("    " + l.strip() if not l.strip().endswith(":") else l.strip())
    def raw(self, s):
        self.lines.append(s)
    def label(self, name):
        self.lines.append(name + ":")
    def ext(self, lst):
        for l in lst:
            self(l)
    def text(self):
        return "\n".join(self.lines) + "\n"

def v(a, n=1):
    return f"v{a}" if n == 1 else f"v[{a}:{a+n-1}]"
def a(x, n=1):
    return f"a{x}" if n == 1 else f"a[{x}:{x+n-1}]"
def s(x, n=1):
    return f"s{x}" if n == 1 else f"s[{x}:{x+n-1}]"

def srd(A, d, base, nbytes):
    A(f"s_mov_b32 s{d}, s{base}")
    A(f"s_and_b32 s{d+1}, s{base+1}, 0xffff")
    A(f"s_mov_b32 s{d+2}, {nbytes:#x}")
    A(f"s_mov_b32 s{d+3}, 0x00020000")

def srd_off(A, d, base, off, nbytes):
    A(f"s_add_u32 s{d}, s{base}, {off:#x}")
    A(f"s_addc_u32 s{d+1}, s{base+1}, 0")
    A(f"s_and_b32 s{d+1}, s{d+1}, 0xffff")
    A(f"s_mov_b32 s{d+2}, {nbytes:#x}")
    A(f"s_mov_b32 s{d+3}, 0x00020000")

def kernel_begin(A, name):
    A.raw(".text")
    A.raw(f".globl {name}")
    A.raw(".p2align 8")
    A.raw(f".type {name},@function")
    A.label(name)

def kernel_desc(name, nv, acc_off, ns=102):
    return f""".section .rodata,"a"
.p2align 6
.amdhsa_kernel {name}
  .amdhsa_next_free_vgpr {nv}
  .amdhsa_next_free_sgpr {ns}
  .amdhsa_accum_offset {acc_off}
  .amdhsa_group_segment_fixed_size 0
  .amdhsa_kernarg_size 80
  .amdhsa_user_sgpr_count 2
  .amdhsa_user_sgpr_kernarg_segment_ptr 1
  .amdhsa_system_sgpr_workgroup_id_x 1
.end_amdhsa_kernel
"""

class LgkmTracker:
    def __init__(self, A):
        self.A = A
        self.issued = 0
        self.done = 0
    def issue(self, line):
        if self.issued - self.done >= 15: self.need(self.issued - 12)
        self.A(line)
        self.issued += 1
        return self.issued - 1
    def need(self, idx):
        if idx < self.done:
            return
        n = self.issued - 1 - idx
        n = min(n, 15)
        self.A(f"s_waitcnt lgkmcnt({n})")
        self.done = self.issued - n
    def drain(self):
        if self.done < self.issued:
            self.A("s_waitcnt lgkmcnt(0)")
            self.done = self.issued

WS_XN = 0
WS_Q = 4 << 20
WS_KV = 8 << 20
WS_A2 = 16 << 20
A2_BYTES = 16 * 288 * 4096
WS_PART = 42 << 20

STAMPS = False
STAMP_REGION = 0
def stamp(A, n):
    if not globals()['STAMPS']: return
    A(f"s_memtime s[{76+4*n}:{77+4*n}]")
    A(f"s_memrealtime s[{78+4*n}:{79+4*n}]")
def stamp_flush(A, nst, wave_sgpr, srd_base_pair, total=5):
    if not STAMPS: return
    A("s_waitcnt lgkmcnt(0)")
    A(f"s_add_u32 s64, s{srd_base_pair}, {(60<<20) + (globals()['STAMP_REGION'] << 20):#x}")
    A(f"s_addc_u32 s65, s{srd_base_pair+1}, 0")
    A("s_and_b32 s65, s65, 0xffff")
    A("s_mov_b32 s66, 0x100000")
    A("s_mov_b32 s67, 0x00020000")
    A(f"s_lshl_b32 s68, s2, 3")
    A(f"s_add_u32 s68, s68, s{wave_sgpr}")
    A(f"s_mul_i32 s68, s68, {total*8}")
    A("v_mov_b32 v0, 0")
    for n in range(nst):
        A(f"v_mov_b32 v2, s{76+4*n}")
        A(f"v_mov_b32 v3, s{78+4*n}")
        A(f"buffer_store_dwordx2 v[2:3], v0, s[64:67], s68 offen offset:{8*n}")
        A("s_nop 1")

import os as _os
STAMP_KEYS = _os.environ.get("STAMP_AT", "start,g1end,atstart,atend,woend,end").split(",")
def kstamp(A, key):
    if not globals()['STAMPS'] or key not in STAMP_KEYS: return
    stamp(A, STAMP_KEYS.index(key))
    A("s_waitcnt lgkmcnt(0)")

class VmTracker:
    def __init__(self, A):
        self.A = A; self.issued = 0; self.done = 0
    def issue(self, line=None):
        if line: self.A(line)
        self.issued += 1
        return self.issued - 1
    def wait_text(self, idx):
        if idx < self.done: return None
        n = min(self.issued - 1 - idx, 63)
        self.done = self.issued - n
        return f"s_waitcnt vmcnt({n})"
    def need(self, idx):
        t = self.wait_text(idx)
        if t: self.A(t)
    def mark(self):
        return self.issued
    def need_mark(self, m):
        n = min(self.issued - m, 63)
        self.A(f"s_waitcnt vmcnt({n})")
        self.done = max(self.done, self.issued - n)

WS_FLAG = 39 << 20
FQ, FH, FO, FS, FC, FP = 0, 4096, 5120, 6144, 7168, 8192
FX = 64

_ct = [0]
def code_touch(lab0, lab1, vtmp, vdst, sp):
    _ct[0] += 1
    here = f".Lct{_ct[0]}"
    return [f"s_getpc_b64 s[{sp}:{sp+1}]\n{here}:\ns_add_u32 s{sp}, s{sp}, {lab0}-{here}\ns_addc_u32 s{sp+1}, s{sp+1}, 0",
            f"s_lshr_b32 s{sp+2}, s2, 3", f"s_lshl_b32 s{sp+2}, s{sp+2}, 2", f"s_add_u32 s{sp+2}, s{sp+2}, s31",
            f"s_and_b32 s{sp+2}, s{sp+2}, 15", f"s_lshl_b32 s{sp+2}, s{sp+2}, 7",
            f"v_lshlrev_b32 v{vtmp}, 11, v2", f"v_add_u32 v{vtmp}, s{sp+2}, v{vtmp}",
            f"v_min_u32 v{vtmp}, {lab1}-{lab0}-4, v{vtmp}",
            f"global_load_dword v{vdst}, v{vtmp}, s[{sp}:{sp+1}]"]

WS_STAT = (39 << 20) + (64 << 10)
WS_CS = (39 << 20) + (128 << 10)

class DualVm:
    def __init__(self, vm):
        import copy
        A = vm.A; vm.A = None
        self.__dict__['paths_'] = [vm, copy.deepcopy(vm)]; self.__dict__['A'] = A; self.__dict__['inblock'] = False
        self.__dict__['g'] = {k: (i, i) for k, i in vm.g.items()}
        for k, x in vm.__dict__.items():
            if k not in ('A', 'g', 'issued', 'done') : self.__dict__[k] = (x, x) if isinstance(x, int) else x
    def issue(self, line=None):
        if line: self.A(line)
        return (self.paths_[0].issue(), None if self.inblock else self.paths_[1].issue())
    def need(self, idx):
        ns = []
        for t, i in zip(self.paths_[:1] if self.inblock else self.paths_, idx):
            if i is not None and i >= t.done: ns.append(min(t.issued - 1 - i, 63))
        if not ns: return
        n = min(ns); self.A(f"s_waitcnt vmcnt({n})")
        for t in (self.paths_[:1] if self.inblock else self.paths_): t.done = max(t.done, t.issued - n)
    def enter(self): self.saved = {k: i[1] for k, i in self.g.items()}; self.inblock = True
    def leave(self, shift):
        self.inblock = False
        for k, i in self.saved.items():
            if k + shift in self.g: self.g[k + shift] = (self.g[k + shift][0], i)
```

```python
class Asm:
    def __init__(self):
        self.lines = []
    def __call__(self, s):
        for l in s.strip("\n").split("\n"):
            self.lines.append("    " + l.strip() if not l.strip().endswith(":") else l.strip())
    def raw(self, s):
        self.lines.append(s)
    def label(self, name):
        self.lines.append(name + ":")
    def ext(self, lst):
        for l in lst:
            self(l)
    def text(self):
        return "\n".join(self.lines) + "\n"

def v(a, n=1):
    return f"v{a}" if n == 1 else f"v[{a}:{a+n-1}]"
def a(x, n=1):
    return f"a{x}" if n == 1 else f"a[{x}:{x+n-1}]"
def s(x, n=1):
    return f"s{x}" if n == 1 else f"s[{x}:{x+n-1}]"

def srd(A, d, base, nbytes):
    A(f"s_mov_b32 s{d}, s{base}")
    A(f"s_and_b32 s{d+1}, s{base+1}, 0xffff")
    A(f"s_mov_b32 s{d+2}, {nbytes:#x}")
    A(f"s_mov_b32 s{d+3}, 0x00020000")

def srd_off(A, d, base, off, nbytes):
    A(f"s_add_u32 s{d}, s{base}, {off:#x}")
    A(f"s_addc_u32 s{d+1}, s{base+1}, 0")
    A(f"s_and_b32 s{d+1}, s{d+1}, 0xffff")
    A(f"s_mov_b32 s{d+2}, {nbytes:#x}")
    A(f"s_mov_b32 s{d+3}, 0x00020000")

def kernel_begin(A, name):
    A.raw(".text")
    A.raw(f".globl {name}")
    A.raw(".p2align 8")
    A.raw(f".type {name},@function")
    A.label(name)

def kernel_desc(name, nv, acc_off, ns=102):
    return f""".section .rodata,"a"
.p2align 6
.amdhsa_kernel {name}
  .amdhsa_next_free_vgpr {nv}
  .amdhsa_next_free_sgpr {ns}
  .amdhsa_accum_offset {acc_off}
  .amdhsa_group_segment_fixed_size 0
  .amdhsa_kernarg_size 80
  .amdhsa_user_sgpr_count 2
  .amdhsa_user_sgpr_kernarg_segment_ptr 1
  .amdhsa_system_sgpr_workgroup_id_x 1
.end_amdhsa_kernel
"""

class LgkmTracker:
    def __init__(self, A):
        self.A = A
        self.issued = 0
        self.done = 0
    def issue(self, line):
        if self.issued - self.done >= 15: self.need(self.issued - 12)
        self.A(line)
        self.issued += 1
        return self.issued - 1
    def need(self, idx):
        if idx < self.done:
            return
        n = self.issued - 1 - idx
        n = min(n, 15)
        self.A(f"s_waitcnt lgkmcnt({n})")
        self.done = self.issued - n
    def drain(self):
        if self.done < self.issued:
            self.A("s_waitcnt lgkmcnt(0)")
            self.done = self.issued

WS_XN = 0
WS_Q = 4 << 20
WS_KV = 8 << 20
WS_A2 = 16 << 20
A2_BYTES = 16 * 288 * 4096
WS_PART = 42 << 20

STAMPS = False
STAMP_REGION = 0
def stamp(A, n):
    if not globals()['STAMPS']: return
    A(f"s_memtime s[{76+4*n}:{77+4*n}]")
    A(f"s_memrealtime s[{78+4*n}:{79+4*n}]")
def stamp_flush(A, nst, wave_sgpr, srd_base_pair, total=5):
    if not STAMPS: return
    A("s_waitcnt lgkmcnt(0)")
    A(f"s_add_u32 s64, s{srd_base_pair}, {(60<<20) + (globals()['STAMP_REGION'] << 20):#x}")
    A(f"s_addc_u32 s65, s{srd_base_pair+1}, 0")
    A("s_and_b32 s65, s65, 0xffff")
    A("s_mov_b32 s66, 0x100000")
    A("s_mov_b32 s67, 0x00020000")
    A(f"s_lshl_b32 s68, s2, 3")
    A(f"s_add_u32 s68, s68, s{wave_sgpr}")
    A(f"s_mul_i32 s68, s68, {total*8}")
    A("v_mov_b32 v0, 0")
    for n in range(nst):
        A(f"v_mov_b32 v2, s{76+4*n}")
        A(f"v_mov_b32 v3, s{78+4*n}")
        A(f"buffer_store_dwordx2 v[2:3], v0, s[64:67], s68 offen offset:{8*n}")
        A("s_nop 1")

import os as _os
STAMP_KEYS = _os.environ.get("STAMP_AT", "start,g1end,atstart,atend,woend,end").split(",")
PROF_KEYS = []
def kstamp(A, key):
    if globals()['STAMPS'] and _os.environ.get("PROF") and (key[:2] in ("at", "dn") or key in ("woend", "end")):
        import re
        m = re.fullmatch(r"(at|dn)(\d+)", key)
        if m and ((m.group(1) == "dn" and int(m.group(2)) >= 22 and int(m.group(2)) % 2) or (m.group(1) == "at" and int(m.group(2)) < 19 and int(m.group(2)) % 2)): return
        if key not in PROF_KEYS: PROF_KEYS.append(key)
        assert len(PROF_KEYS) <= 64
        A("s_memrealtime s[98:99]"); A("s_waitcnt lgkmcnt(0)"); A(f"v_writelane_b32 v255, s98, {PROF_KEYS.index(key)}")
        if key != "end": return
        A(f"s_add_u32 s64, s6, {61<<20:#x}"); A("s_addc_u32 s65, s7, 0"); A("s_and_b32 s65, s65, 0xffff"); A("s_mov_b32 s66, 0x100000"); A("s_mov_b32 s67, 0x00020000")
        A("s_lshl_b32 s68, s2, 2"); A("s_add_u32 s68, s68, s31"); A("s_lshl_b32 s68, s68, 8"); A("v_lshlrev_b32 v254, 2, v2")
        A("buffer_store_dword v255, v254, s[64:67], s68 offen")
        open("prof_keys.txt", "w").write(",".join(PROF_KEYS))
    if not globals()['STAMPS'] or key not in STAMP_KEYS: return
    stamp(A, STAMP_KEYS.index(key))
    A("s_waitcnt lgkmcnt(0)")

class VmTracker:
    def __init__(self, A):
        self.A = A; self.issued = 0; self.done = 0
    def issue(self, line=None):
        if line: self.A(line)
        self.issued += 1
        return self.issued - 1
    def wait_text(self, idx):
        if idx < self.done: return None
        n = min(self.issued - 1 - idx, 63)
        self.done = self.issued - n
        return f"s_waitcnt vmcnt({n})"
    def need(self, idx):
        t = self.wait_text(idx)
        if t: self.A(t)
    def mark(self):
        return self.issued
    def need_mark(self, m):
        n = min(self.issued - m, 63)
        self.A(f"s_waitcnt vmcnt({n})")
        self.done = max(self.done, self.issued - n)

WS_FLAG = 39 << 20
FQ, FH, FO, FS, FC, FP = 0, 4096, 5120, 6144, 7168, 8192
FX = 64

_ct = [0]
def code_touch(lab0, lab1, vtmp, vdst, sp):
    _ct[0] += 1
    here = f".Lct{_ct[0]}"
    return [f"s_getpc_b64 s[{sp}:{sp+1}]\n{here}:\ns_add_u32 s{sp}, s{sp}, {lab0}-{here}\ns_addc_u32 s{sp+1}, s{sp+1}, 0",
            f"s_lshr_b32 s{sp+2}, s2, 3", f"s_lshl_b32 s{sp+2}, s{sp+2}, 2", f"s_add_u32 s{sp+2}, s{sp+2}, s31",
            f"s_and_b32 s{sp+2}, s{sp+2}, 15", f"s_lshl_b32 s{sp+2}, s{sp+2}, 7",
            f"v_lshlrev_b32 v{vtmp}, 11, v2", f"v_add_u32 v{vtmp}, s{sp+2}, v{vtmp}",
            f"v_min_u32 v{vtmp}, {lab1}-{lab0}-4, v{vtmp}",
            f"global_load_dword v{vdst}, v{vtmp}, s[{sp}:{sp+1}]"]

WS_STAT = (39 << 20) + (64 << 10)
WS_CS = (39 << 20) + (128 << 10)

class DualVm:
    def __init__(self, vm):
        import copy
        A = vm.A; vm.A = None
        self.__dict__['paths_'] = [vm, copy.deepcopy(vm)]; self.__dict__['A'] = A; self.__dict__['inblock'] = False
        self.__dict__['g'] = {k: (i, i) for k, i in vm.g.items()}
        for k, x in vm.__dict__.items():
            if k not in ('A', 'g', 'issued', 'done') : self.__dict__[k] = (x, x) if isinstance(x, int) else x
    def issue(self, line=None):
        if line: self.A(line)
        return (self.paths_[0].issue(), None if self.inblock else self.paths_[1].issue())
    def need(self, idx):
        ns = []
        for t, i in zip(self.paths_[:1] if self.inblock else self.paths_, idx):
            if i is not None and i >= t.done: ns.append(min(t.issued - 1 - i, 63))
        if not ns: return
        n = min(ns); self.A(f"s_waitcnt vmcnt({n})")
        for t in (self.paths_[:1] if self.inblock else self.paths_): t.done = max(t.done, t.issued - n)
    def enter(self): self.saved = {k: i[1] for k, i in self.g.items()}; self.inblock = True
    def leave(self, shift):
        self.inblock = False
        for k, i in self.saved.items():
            if k + shift in self.g: self.g[k + shift] = (self.g[k + shift][0], i)

PX = int(_os.environ.get("PX", 5))
```

```python
import sys, importlib, os
sys.path.insert(0, "gen")
from asm import *
HDR = open("parallel_sum__softmax_full_mha__swiglu_ffn__prompt.s.ref").read().split("; Override launch")[0]
DOC = """; One persistent kernel, 256 workgroups x 4 waves (one workgroup per CU), written by a generator script (gen/*.py):
"""
def build(gens, out):
    A = Asm(); infos = []
    for g in gens: infos.append(g(A))
    txt = HDR
    single = len(infos) == 1 and os.environ.get("SINGLE")
    if single: txt += f"; @launch grid=({infos[0]['grid']},1,1) block=({infos[0]['block']},1,1) lds={infos[0]['lds']}\n"
    for i in ([] if single else infos):
        txt += f"; @launch kernel={i['name']} grid=({i['grid']},1,1) block=({i['block']},1,1) lds={i['lds']}\n"
    body = A.text().replace(", ", ",").replace(" offset:0 ", " ").replace(" offset:0\n", "\n").replace("\n    ", "\n")
    if not os.environ.get("NOMERGE"):
        import re
        body = re.sub(r"s_waitcnt vmcnt\((\d+)\)\ns_waitcnt lgkmcnt\((\d+)\)\n", r"s_waitcnt vmcnt(\1) lgkmcnt(\2)\n", body)
        body = re.sub(r"s_waitcnt lgkmcnt\((\d+)\)\ns_waitcnt vmcnt\((\d+)\)\n", r"s_waitcnt vmcnt(\2) lgkmcnt(\1)\n", body)
    txt += DOC + '.amdgcn_target "amdgcn-amd-amdhsa--gfx950"\n' + body
    for i in infos: txt += kernel_desc(i['name'], i['nv'], i['acc'])
    if single:
        import re
        txt = re.sub(r"\b" + infos[0]['name'] + r"_", "L_", txt).replace(infos[0]['name'], "parallel_sum__softmax_full_mha__swiglu_ffn__prompt_kernel")
    open(out, "w").write(txt)
    return infos
if __name__ == "__main__":
    import asm
    if "--stamps" in sys.argv: asm.STAMPS = True; sys.argv.remove("--stamps")
    which = sys.argv[2].split(",") if len(sys.argv) > 2 else ["ln", "gemm1", "attn", "gemm2"]
    stamp_on = asm.STAMPS; sk = sys.argv[3] if len(sys.argv) > 3 else which[-1]
    gens = []
    for w in which:
        m = importlib.import_module("k_" + w); f = getattr(m, "gen_" + w)
        def g(A, f=f, w=w):
            asm.STAMPS = stamp_on and (w == sk or sk == "all")
            asm.STAMP_REGION = which.index(w) if sk == "all" else 0
            return f(A)
        gens.append(g)
    build(gens, sys.argv[1])
```

```python
class Asm:
    def __init__(self):
        self.lines = []
    def __call__(self, s):
        for l in s.strip("\n").split("\n"):
            self.lines.append("    " + l.strip() if not l.strip().endswith(":") else l.strip())
    def raw(self, s):
        self.lines.append(s)
    def label(self, name):
        self.lines.append(name + ":")
    def ext(self, lst):
        for l in lst:
            self(l)
    def text(self):
        return "\n".join(self.lines) + "\n"

def v(a, n=1):
    return f"v{a}" if n == 1 else f"v[{a}:{a+n-1}]"
def a(x, n=1):
    return f"a{x}" if n == 1 else f"a[{x}:{x+n-1}]"
def s(x, n=1):
    return f"s{x}" if n == 1 else f"s[{x}:{x+n-1}]"

def srd(A, d, base, nbytes):
    A(f"s_mov_b32 s{d}, s{base}")
    A(f"s_and_b32 s{d+1}, s{base+1}, 0xffff")
    A(f"s_mov_b32 s{d+2}, {nbytes:#x}")
    A(f"s_mov_b32 s{d+3}, 0x00020000")

def srd_off(A, d, base, off, nbytes):
    A(f"s_add_u32 s{d}, s{base}, {off:#x}")
    A(f"s_addc_u32 s{d+1}, s{base+1}, 0")
    A(f"s_and_b32 s{d+1}, s{d+1}, 0xffff")
    A(f"s_mov_b32 s{d+2}, {nbytes:#x}")
    A(f"s_mov_b32 s{d+3}, 0x00020000")

def kernel_begin(A, name):
    A.raw(".text")
    A.raw(f".globl {name}")
    A.raw(".p2align 8")
    A.raw(f".type {name},@function")
    A.label(name)

def kernel_desc(name, nv, acc_off, ns=102):
    return f""".section .rodata,"a"
.p2align 6
.amdhsa_kernel {name}
  .amdhsa_next_free_vgpr {nv}
  .amdhsa_next_free_sgpr {ns}
  .amdhsa_accum_offset {acc_off}
  .amdhsa_group_segment_fixed_size 0
  .amdhsa_kernarg_size 80
  .amdhsa_user_sgpr_count 2
  .amdhsa_user_sgpr_kernarg_segment_ptr 1
  .amdhsa_system_sgpr_workgroup_id_x 1
.end_amdhsa_kernel
"""

class LgkmTracker:
    def __init__(self, A):
        self.A = A
        self.issued = 0
        self.done = 0
    def issue(self, line):
        if self.issued - self.done >= 15: self.need(self.issued - 12)
        self.A(line)
        self.issued += 1
        return self.issued - 1
    def need(self, idx):
        if idx < self.done:
            return
        n = self.issued - 1 - idx
        n = min(n, 15)
        self.A(f"s_waitcnt lgkmcnt({n})")
        self.done = self.issued - n
    def drain(self):
        if self.done < self.issued:
            self.A("s_waitcnt lgkmcnt(0)")
            self.done = self.issued

WS_XN = 0
WS_Q = 4 << 20
WS_KV = 8 << 20
WS_A2 = 16 << 20
A2_BYTES = 16 * 288 * 4096
WS_PART = 42 << 20

STAMPS = False
STAMP_REGION = 0
def stamp(A, n):
    if not globals()['STAMPS']: return
    A(f"s_memtime s[{76+4*n}:{77+4*n}]")
    A(f"s_memrealtime s[{78+4*n}:{79+4*n}]")
def stamp_flush(A, nst, wave_sgpr, srd_base_pair, total=5):
    if not STAMPS: return
    if __import__("os").environ.get("DBGOUT"):
        import random
        t = f".Ldbg{random.randrange(1<<30)}"
        A("s_load_dwordx2 s[64:65], s[0:1], 64"); A("s_waitcnt lgkmcnt(0)"); A("s_and_b32 s65, s65, 0xffff"); A("s_mov_b32 s66, 256"); A("s_mov_b32 s67, 0x00020000")
        A("s_cmp_lg_u32 s31, 0"); A(f"s_cbranch_scc1 {t}"); A("s_cmp_eq_u32 s2, 5"); A("s_cselect_b32 s68, 48, 32"); A("s_cmp_eq_u32 s2, 0"); A("s_cselect_b32 s69, 1, 0"); A("s_cmp_eq_u32 s2, 5"); A("s_cselect_b32 s69, 1, s69")
        A("s_cmp_eq_u32 s69, 0"); A(f"s_cbranch_scc1 {t}"); A("v_mov_b32 v0, 0")
        for n in range(1, 5):
            A(f"s_sub_u32 s70, s{78+4*n}, s78"); A("v_mov_b32 v2, s70"); A(f"buffer_store_dword v2, v0, s[64:67], s68 offen offset:{4*(n-1)}"); A("s_nop 1")
        A.label(t)
        return
    A("s_waitcnt lgkmcnt(0)")
    A(f"s_add_u32 s64, s{srd_base_pair}, {(60<<20) + (globals()['STAMP_REGION'] << 20):#x}")
    A(f"s_addc_u32 s65, s{srd_base_pair+1}, 0")
    A("s_and_b32 s65, s65, 0xffff")
    A("s_mov_b32 s66, 0x100000")
    A("s_mov_b32 s67, 0x00020000")
    A(f"s_lshl_b32 s68, s2, 3")
    A(f"s_add_u32 s68, s68, s{wave_sgpr}")
    A(f"s_mul_i32 s68, s68, {total*8}")
    A("v_mov_b32 v0, 0")
    for n in range(nst):
        A(f"v_mov_b32 v2, s{76+4*n}")
        A(f"v_mov_b32 v3, s{78+4*n}")
        A(f"buffer_store_dwordx2 v[2:3], v0, s[64:67], s68 offen offset:{8*n}")
        A("s_nop 1")

import os as _os
STAMP_KEYS = _os.environ.get("STAMP_AT", "start,g1end,atstart,atend,woend,end").split(",")
PROF_KEYS = []
def kstamp(A, key):
    if globals()['STAMPS'] and _os.environ.get("PROF") and (key[:2] in ("at", "dn") or key in ("woend", "end")):
        import re
        m = re.fullmatch(r"(at|dn)(\d+)", key)
        if m and ((m.group(1) == "dn" and int(m.group(2)) >= 22 and int(m.group(2)) % 2) or (m.group(1) == "at" and int(m.group(2)) < 19 and int(m.group(2)) % 2)): return
        if key not in PROF_KEYS: PROF_KEYS.append(key)
        assert len(PROF_KEYS) <= 64
        A("s_memrealtime s[98:99]"); A("s_waitcnt lgkmcnt(0)"); A(f"v_writelane_b32 v255, s98, {PROF_KEYS.index(key)}")
        if key != "end": return
        A(f"s_add_u32 s64, s6, {61<<20:#x}"); A("s_addc_u32 s65, s7, 0"); A("s_and_b32 s65, s65, 0xffff"); A("s_mov_b32 s66, 0x100000"); A("s_mov_b32 s67, 0x00020000")
        A("s_lshl_b32 s68, s2, 2"); A("s_add_u32 s68, s68, s31"); A("s_lshl_b32 s68, s68, 8"); A("v_lshlrev_b32 v254, 2, v2")
        A("buffer_store_dword v255, v254, s[64:67], s68 offen")
        open("prof_keys.txt", "w").write(",".join(PROF_KEYS))
    if not globals()['STAMPS'] or key not in STAMP_KEYS: return
    stamp(A, STAMP_KEYS.index(key))
    A("s_waitcnt lgkmcnt(0)")

class VmTracker:
    def __init__(self, A):
        self.A = A; self.issued = 0; self.done = 0
    def issue(self, line=None):
        if line: self.A(line)
        self.issued += 1
        return self.issued - 1
    def wait_text(self, idx):
        if idx < self.done: return None
        n = min(self.issued - 1 - idx, 63)
        self.done = self.issued - n
        return f"s_waitcnt vmcnt({n})"
    def need(self, idx):
        t = self.wait_text(idx)
        if t: self.A(t)
    def mark(self):
        return self.issued
    def need_mark(self, m):
        n = min(self.issued - m, 63)
        self.A(f"s_waitcnt vmcnt({n})")
        self.done = max(self.done, self.issued - n)

WS_FLAG = 39 << 20
FQ, FH, FO, FS, FC, FP = 0, 4096, 5120, 6144, 7168, 8192
FX = 64

_ct = [0]
def code_touch(lab0, lab1, vtmp, vdst, sp):
    _ct[0] += 1
    here = f".Lct{_ct[0]}"
    return [f"s_getpc_b64 s[{sp}:{sp+1}]\n{here}:\ns_add_u32 s{sp}, s{sp}, {lab0}-{here}\ns_addc_u32 s{sp+1}, s{sp+1}, 0",
            f"s_lshr_b32 s{sp+2}, s2, 3", f"s_lshl_b32 s{sp+2}, s{sp+2}, 2", f"s_add_u32 s{sp+2}, s{sp+2}, s31",
            f"s_and_b32 s{sp+2}, s{sp+2}, 15", f"s_lshl_b32 s{sp+2}, s{sp+2}, 7",
            f"v_lshlrev_b32 v{vtmp}, 11, v2", f"v_add_u32 v{vtmp}, s{sp+2}, v{vtmp}",
            f"v_min_u32 v{vtmp}, {lab1}-{lab0}-4, v{vtmp}",
            f"global_load_dword v{vdst}, v{vtmp}, s[{sp}:{sp+1}]"]

WS_STAT = (39 << 20) + (64 << 10)
WS_CS = (39 << 20) + (128 << 10)

class DualVm:
    def __init__(self, vm):
        import copy
        A = vm.A; vm.A = None
        self.__dict__['paths_'] = [vm, copy.deepcopy(vm)]; self.__dict__['A'] = A; self.__dict__['inblock'] = False
        self.__dict__['g'] = {k: (i, i) for k, i in vm.g.items()}
        for k, x in vm.__dict__.items():
            if k not in ('A', 'g', 'issued', 'done') : self.__dict__[k] = (x, x) if isinstance(x, int) else x
    def issue(self, line=None):
        if line: self.A(line)
        return (self.paths_[0].issue(), None if self.inblock else self.paths_[1].issue())
    def need(self, idx):
        ns = []
        for t, i in zip(self.paths_[:1] if self.inblock else self.paths_, idx):
            if i is not None and i >= t.done: ns.append(min(t.issued - 1 - i, 63))
        if not ns: return
        n = min(ns); self.A(f"s_waitcnt vmcnt({n})")
        for t in (self.paths_[:1] if self.inblock else self.paths_): t.done = max(t.done, t.issued - n)
    def enter(self): self.saved = {k: i[1] for k, i in self.g.items()}; self.inblock = True
    def leave(self, shift):
        self.inblock = False
        for k, i in self.saved.items():
            if k + shift in self.g: self.g[k + shift] = (self.g[k + shift][0], i)

PX = int(_os.environ.get("PX", 5))
```
